```python
import torch

def _softmax(x, axis=-1):
    return torch.softmax(x, dim=axis)
def _gelu(x):
    return torch.nn.functional.gelu(x, approximate="tanh")
def _silu(x):
    return torch.nn.functional.silu(x)
def _sigmoid(x):
    return torch.sigmoid(x)
def _layernorm(x, axis=-1, eps=1e-5):
    m = x.mean(dim=axis, keepdim=True)
    v = x.var(dim=axis, keepdim=True, unbiased=False)
    return (x - m) / torch.sqrt(v + eps)
def _scatter_add(tgt, idx, src, axis=0):
    return tgt.clone().index_add_(axis, idx, src)
def _segment_sum(src, seg, n):
    out = torch.zeros((n,) + src.shape[1:], dtype=src.dtype)
    return out.index_add_(0, seg, src)
def _pad(x, pw):
    flat = tuple(v for pair in reversed(pw) for v in pair)
    return torch.nn.functional.pad(x, flat)

kernel_name = 'interleave_layers__spectral_fnet__glu_gated_glu__prompt'

def setup_inputs():

    _w = (lambda a: (lambda t: t.to(torch.bfloat16) if t.is_floating_point() else t)(torch.as_tensor(a)))
    def _A_setup():
        B, S, D = 1, 2048, 640
        ns = torch.arange(S)[:, None] * torch.arange(S)[None, :]
        nd = torch.arange(D)[:, None] * torch.arange(D)[None, :]
        Ws_re = torch.cos(-2.0 * torch.pi * ns / S).to(float)
        Ws_im = torch.sin(-2.0 * torch.pi * ns / S).to(float)
        Wd_re = torch.cos(-2.0 * torch.pi * nd / D).to(float)
        Wd_im = torch.sin(-2.0 * torch.pi * nd / D).to(float)
        return {
            "x": _w((lambda *s: torch.randn(*s, dtype=torch.bfloat16) * 0.05)(B, S, D)),
            "dft_seq_re": _w(Ws_re),
            "dft_seq_im": _w(Ws_im),
            "dft_hid_re": _w(Wd_re),
            "dft_hid_im": _w(Wd_im),
        }
    _A_in = _A_setup()

    def _B_setup():
        B, S, D, F = 1, 2048, 640, 1728
        return {
            "x": _w((lambda *s: torch.randn(*s, dtype=torch.bfloat16) * 0.05)(B, S, D)),
            "w_gate": _w((lambda *s: torch.randn(*s, dtype=torch.bfloat16) * 1.6)(D, F)),
            "w_up": _w((lambda *s: torch.randn(*s, dtype=torch.bfloat16) * 0.8)(D, F)),
            "w_down": _w((lambda *s: torch.randn(*s, dtype=torch.bfloat16) * 0.8)(F, D)),
        }
    _B_in = _B_setup()

    return {
        "A_x": _A_in["x"],
        "A_dft_seq_re": _A_in["dft_seq_re"],
        "A_dft_seq_im": _A_in["dft_seq_im"],
        "A_dft_hid_re": _A_in["dft_hid_re"],
        "A_dft_hid_im": _A_in["dft_hid_im"],
        "B_x": _B_in["x"],
        "B_w_gate": _B_in["w_gate"],
        "B_w_up": _B_in["w_up"],
        "B_w_down": _B_in["w_down"],
    }

def reference(A_x, A_dft_seq_re, A_dft_seq_im, A_dft_hid_re, A_dft_hid_im, B_x, B_w_gate, B_w_up, B_w_down):
    def _A_ref(x, dft_seq_re, dft_seq_im, dft_hid_re, dft_hid_im):
        a = torch.einsum("bsd,ed->bse", x, dft_hid_re)
        b = torch.einsum("bsd,ed->bse", x, dft_hid_im)
        y = torch.einsum("ts,bse->bte", dft_seq_re, a) - torch.einsum("ts,bse->bte", dft_seq_im, b)
        return y

    def _B_ref(x, w_gate, w_up, w_down):
        g = torch.einsum("bsd,df->bsf", x, w_gate)
        u = torch.einsum("bsd,df->bsf", x, w_up)
        h = _sigmoid(g) * u
        return torch.einsum("bsf,fd->bsd", h, w_down)

    x = A_x
    x = x + _A_ref(_layernorm(x, axis=-1), A_dft_seq_re, A_dft_seq_im, A_dft_hid_re, A_dft_hid_im)
    x = x + _B_ref(_layernorm(x, axis=-1), B_w_gate, B_w_up, B_w_down)
    x = x + _A_ref(_layernorm(x, axis=-1), A_dft_seq_re, A_dft_seq_im, A_dft_hid_re, A_dft_hid_im)
    x = x + _B_ref(_layernorm(x, axis=-1), B_w_gate, B_w_up, B_w_down)
    return x
```

```python
import sys
S,D,F=2048,640,1728
KN="interleave_layers__spectral_fnet__glu_gated_glu__prompt_kernel"
WS_XN=0; WS_AB=4<<20; WS_X1=12<<20; WS_H=16<<20; WS_WGT=24<<20; WS_WUT=28<<20; WS_WDT=32<<20
out=[]
def A(s): out.append(s)
def head(name):
    A(f".text\n.globl {name}\n.p2align 8\n.type {name},@function\n{name}:")
def tail(name,nv,ns=64):
    A("s_endpgm")
    A(f""".section .rodata,"a"
.p2align 6
.amdhsa_kernel {name}
  .amdhsa_next_free_vgpr {nv}
  .amdhsa_next_free_sgpr {ns}
  .amdhsa_accum_offset {(nv+3)//4*4}
  .amdhsa_group_segment_fixed_size 0
  .amdhsa_kernarg_size 96
  .amdhsa_user_sgpr_count 2
  .amdhsa_user_sgpr_kernarg_segment_ptr 1
  .amdhsa_system_sgpr_workgroup_id_x 1
.end_amdhsa_kernel""")
def srd(s, argoff, off, size):
    A(f"s_load_dwordx2 s[{s}:{s+1}], s[0:1], {argoff}")
    A("s_waitcnt lgkmcnt(0)")
    if off:
        A(f"s_add_u32 s{s}, s{s}, {off}\ns_addc_u32 s{s+1}, s{s+1}, 0")
    A(f"s_mov_b32 s{s+2}, {size}\ns_mov_b32 s{s+3}, 0x20000")
def transpose(name, src_arg, R, C, dst_off):
    head(name)
    n=R*C
    srd(8, src_arg, 0, n*2); srd(12, 88, dst_off, n*2)
    A("s_lshl_b32 s3, s2, 8\nv_add_u32 v1, s3, v0")
    magic=(1<<32)//R+1
    A(f"s_mov_b32 s4, {magic}\nv_mul_hi_u32 v2, v1, s4")
    A(f"s_mov_b32 s5, {R}\nv_mul_lo_u32 v3, v2, s5\nv_sub_u32 v3, v1, v3")
    A(f"s_mov_b32 s5, {C}\nv_mul_lo_u32 v4, v3, s5\nv_add_u32 v4, v4, v2\nv_lshlrev_b32 v4, 1, v4")
    A(f"s_mov_b32 s5, {n}\nv_cmp_gt_u32 vcc, s5, v1\ns_and_saveexec_b64 s[6:7], vcc\ns_cbranch_execz {name}_e")
    A("buffer_load_ushort v5, v4, s[8:11], 0 offen\nv_lshlrev_b32 v1, 1, v1\ns_waitcnt vmcnt(0)\nbuffer_store_short v5, v1, s[12:15], 0 offen")
    A(f"{name}_e:")
    tail(name,8)
def layernorm(name, src_arg, src_off):
    head(name)
    A(f"s_cmp_ge_u32 s2, {S//4}\ns_cbranch_scc1 {name}_e")
    srd(8, src_arg, src_off, S*D*2); srd(12, 88, WS_XN, S*D*2)
    A("v_lshrrev_b32 v1, 6, v0\nv_and_b32 v2, 63, v0\ns_lshl_b32 s3, s2, 2\nv_add_u32 v1, s3, v1")
    A(f"v_mul_u32_u24 v1, {D*2}, v1\nv_lshl_add_u32 v1, v2, 2, v1")
    for i in range(5): A(f"buffer_load_dword v{10+i}, v1, s[8:11], 0 offen offset:{i*256}")
    A("s_waitcnt vmcnt(0)")
    for i in range(5):
        A(f"v_lshlrev_b32 v{20+2*i}, 16, v{10+i}\nv_and_b32 v{21+2*i}, 0xffff0000, v{10+i}")
    A("v_mov_b32 v3, 0")
    for i in range(10): A(f"v_add_f32 v3, v3, v{20+i}")
    def red(r):
        for m in [1,2,4,8,16,32]:
            A(f"v_xor_b32 v5, {m}, v2\nv_lshlrev_b32 v5, 2, v5\nds_bpermute_b32 v6, v5, v{r}\ns_waitcnt lgkmcnt(0)\nv_add_f32 v{r}, v{r}, v6")
    red(3)
    A(f"v_mul_f32 v3, {1.0/D}, v3".replace(str(1.0/D), hex(f32(1.0/D))))
    A("v_mov_b32 v4, 0")
    for i in range(10): A(f"v_sub_f32 v{20+i}, v{20+i}, v3\nv_fmac_f32 v4, v{20+i}, v{20+i}")
    red(4)
    A(f"v_mul_f32 v4, {hex(f32(1.0/D))}, v4\nv_add_f32 v4, {hex(f32(1e-5))}, v4\nv_rsq_f32 v4, v4\ns_nop 1")
    for i in range(10): A(f"v_mul_f32 v{20+i}, v{20+i}, v4")
    for i in range(5):
        A(f"v_cvt_pk_bf16_f32 v{10+i}, v{20+2*i}, v{21+2*i}")
        A(f"buffer_store_dword v{10+i}, v1, s[12:15], 0 offen offset:{i*256}")
    A(f"{name}_e:")
    tail(name,40)
import struct
def f32(x): return struct.unpack('<I',struct.pack('<f',x))[0]
def gemm(name, M, N, segs, mode, res=None, dst=None):
    head(name)
    gm=M//64; gn=N//64
    A(f"s_cmp_ge_u32 s2, {gm*gn}\ns_cbranch_scc1 {name}_e")
    magic=(1<<32)//gm+1
    A(f"s_mul_hi_u32 s40, s2, {magic}\ns_mul_i32 s41, s40, {gm}\ns_sub_u32 s41, s2, s41")
    A("v_lshrrev_b32 v1, 6, v0\nv_and_b32 v2, 31, v0\nv_bfe_u32 v3, v0, 5, 1")
    A("v_and_b32 v4, 1, v1\nv_lshrrev_b32 v5, 1, v1")
    A("s_lshl_b32 s42, s41, 6\ns_lshl_b32 s43, s40, 6")
    A("v_lshl_add_u32 v4, v4, 5, s42\nv_lshl_add_u32 v5, v5, 5, s43")
    A("v_add_u32 v6, v4, v2\nv_add_u32 v7, v5, v2")
    nacc=2 if mode=='glu' else 1
    for r in range(16*nacc): A(f"v_mov_b32 v{64+r}, 0")
    for si,sg in enumerate(segs):
        srd(8, sg['Aarg'], sg['Aoff'], sg['Asize']); srd(12, sg['Barg'], sg['Boff'], sg['Bsize'])
        if mode=='glu': srd(16, 88, WS_WUT, F*D*2)
        if isinstance(sg['Aarg2'],int) if 'Aarg2' in sg else False:
            pass
        A(f"s_mov_b32 s44, {sg['Astride']}\nv_mul_lo_u32 v8, v6, s44\nv_lshl_add_u32 v8, v3, 4, v8")
        A(f"s_mov_b32 s44, {sg['Bstride']}\nv_mul_lo_u32 v9, v7, s44\nv_lshl_add_u32 v9, v3, 4, v9")
        if sg.get('Bcol',0): A(f"v_add_u32 v9, {sg['Bcol']}, v9")
        if sg.get('Acol',0): A(f"v_add_u32 v8, {sg['Acol']}, v8")
        A(f"s_mov_b32 s45, 0")
        lab=f"{name}_k{si}"
        A(f"{lab}:")
        U=4
        for u in range(U):
            A(f"buffer_load_dwordx4 v[{16+4*u}:{19+4*u}], v8, s[8:11], s45 offen offset:{32*u}")
            A(f"buffer_load_dwordx4 v[{32+4*u}:{35+4*u}], v9, s[12:15], s45 offen offset:{32*u}")
            if mode=='glu': A(f"buffer_load_dwordx4 v[{48+4*u}:{51+4*u}], v8, s[16:19], s45 offen offset:{32*u}")
        A("s_waitcnt vmcnt(0)")
        for u in range(U):
            A(f"v_mfma_f32_32x32x16_bf16 v[64:79], v[{16+4*u}:{19+4*u}], v[{32+4*u}:{35+4*u}], v[64:79]")
            if mode=='glu': A(f"v_mfma_f32_32x32x16_bf16 v[80:95], v[{48+4*u}:{51+4*u}], v[{32+4*u}:{35+4*u}], v[80:95]")
        A(f"s_add_u32 s45, s45, {32*U}\ns_cmp_lt_u32 s45, {sg['K']*2}\ns_cbranch_scc1 {lab}")
    A("s_nop 15\ns_nop 7")
    A("v_lshl_add_u32 v10, v3, 2, v4")
    if mode=='hid':
        srd(20, 88, WS_AB, 640*4096*2)
        A(f"v_cmp_le_u32 vcc, {D}, v7\ns_nop 1\nv_cndmask_b32 v11, 0, 1, vcc")
        A(f"v_mul_u32_u24 v12, {D}, v11\nv_sub_u32 v12, v7, v12")
        A(f"v_lshlrev_b32 v12, 13, v12\nv_lshl_add_u32 v12, v11, 12, v12\nv_lshl_add_u32 v12, v10, 1, v12")
        A("v_lshlrev_b32 v11, 31, v11")
        for r in range(16): A(f"v_xor_b32 v{64+r}, v11, v{64+r}")
        for j in range(4):
            A(f"v_cvt_pk_bf16_f32 v16, v{64+4*j}, v{65+4*j}\nv_cvt_pk_bf16_f32 v17, v{66+4*j}, v{67+4*j}")
            A(f"buffer_store_dwordx2 v[16:17], v12, s[20:23], 0 offen offset:{16*j}\ns_nop 1")
    else:
        ncol = F if mode=='glu' else D
        darg,doff=dst
        srd(20, darg, doff, S*ncol*2)
        A(f"s_mov_b32 s44, {ncol*2}\nv_mul_lo_u32 v12, v7, s44\nv_lshl_add_u32 v12, v10, 1, v12")
        if mode=='res':
            srd(24, res[0], res[1], S*D*2)
            for j in range(4): A(f"buffer_load_dwordx2 v[{16+2*j}:{17+2*j}], v12, s[24:27], 0 offen offset:{16*j}")
            A("s_waitcnt vmcnt(0)")
            for j in range(4):
                for h in range(2):
                    A(f"v_lshlrev_b32 v30, 16, v{16+2*j+h}\nv_and_b32 v31, 0xffff0000, v{16+2*j+h}")
                    A(f"v_add_f32 v{64+4*j+2*h}, v{64+4*j+2*h}, v30\nv_add_f32 v{65+4*j+2*h}, v{65+4*j+2*h}, v31")
        else:
            for r in range(16):
                A(f"v_mul_f32 v30, {hex(f32(-1.4426950408889634))}, v{64+r}\nv_exp_f32 v30, v30\ns_nop 0\nv_add_f32 v30, 1.0, v30\nv_rcp_f32 v30, v30\ns_nop 0\nv_mul_f32 v{64+r}, v30, v{80+r}")
        for j in range(4):
            A(f"v_cvt_pk_bf16_f32 v40, v{64+4*j}, v{65+4*j}\nv_cvt_pk_bf16_f32 v41, v{66+4*j}, v{67+4*j}")
            A(f"buffer_store_dwordx2 v[40:41], v12, s[20:23], 0 offen offset:{16*j}\ns_nop 1")
    A(f"{name}_e:")
    tail(name,96)
def build(extra=0):
    L=[]
    def l(k,g,b=256): L.append(f"; @launch kernel={k} grid=({g},1,1) block=({b},1,1) lds=0")
    l("tg_kernel",(D*F+255)//256); l("tu_kernel",(D*F+255)//256); l("td_kernel",(D*F+255)//256)
    for it in range(2):
        l(f"ln{it}a_kernel",S//4); l("hid_kernel",(S//64)*(1280//64)); l(f"seq{it}_kernel",(D//64)*(S//64))
        l("lnb_kernel",S//4); l("glu_kernel",(F//64)*(S//64)); l(f"down{it}_kernel",(D//64)*(S//64))
    for i in range(extra): l("nop_kernel",256)
    hdr="\n".join(L)+'\n.amdgcn_target "amdgcn-amd-amdhsa--gfx950"\n'
    transpose("tg_kernel",48,D,F,WS_WGT); transpose("tu_kernel",56,D,F,WS_WUT); transpose("td_kernel",64,F,D,WS_WDT)
    WS_X2=40<<20
    layernorm("ln0a_kernel",0,0); layernorm("ln1a_kernel",88,WS_X2); layernorm("lnb_kernel",88,WS_X1)
    head_hid()
    gemm("seq0_kernel",D,S,[dict(Aarg=88,Aoff=WS_AB,Astride=8192,Asize=640*8192,Barg=8,Boff=0,Bstride=4096,Bsize=S*S*2,K=S),
                            dict(Aarg=88,Aoff=WS_AB,Astride=8192,Asize=640*8192,Acol=4096,Barg=16,Boff=0,Bstride=4096,Bsize=S*S*2,K=S)],'res',res=(0,0),dst=(88,WS_X1))
    gemm("seq1_kernel",D,S,[dict(Aarg=88,Aoff=WS_AB,Astride=8192,Asize=640*8192,Barg=8,Boff=0,Bstride=4096,Bsize=S*S*2,K=S),
                            dict(Aarg=88,Aoff=WS_AB,Astride=8192,Asize=640*8192,Acol=4096,Barg=16,Boff=0,Bstride=4096,Bsize=S*S*2,K=S)],'res',res=(88,WS_X2),dst=(88,WS_X1))
    gemm("glu_kernel",F,S,[dict(Aarg=88,Aoff=WS_WGT,Astride=D*2,Asize=F*D*2,Barg=88,Boff=WS_XN,Bstride=D*2,Bsize=S*D*2,K=D)],'glu',dst=(88,WS_H))
    gemm("down0_kernel",D,S,[dict(Aarg=88,Aoff=WS_WDT,Astride=F*2,Asize=F*D*2,Barg=88,Boff=WS_H,Bstride=F*2,Bsize=S*F*2,K=F)],'res',res=(88,WS_X1),dst=(88,WS_X2))
    gemm("down1_kernel",D,S,[dict(Aarg=88,Aoff=WS_WDT,Astride=F*2,Asize=F*D*2,Barg=88,Boff=WS_H,Bstride=F*2,Bsize=S*F*2,K=F)],'res',res=(88,WS_X1),dst=(72,0))
    head("nop_kernel"); tail("nop_kernel",8)
    return hdr+"\n".join(out)+"\n"
def head_hid():
    global out
    gemm("hid_kernel",S,1280,[dict(Aarg=88,Aoff=WS_XN,Astride=D*2,Asize=S*D*2,Barg=24,Boff=0,Bstride=D*2,Bsize=D*D*2,K=D)],'hid')
    txt="\n".join(out)
    i=txt.rindex("hid_kernel:")
    pre,post=txt[:i],txt[i:]
    post=post.replace("s_load_dwordx2 s[12:13], s[0:1], 24",
       "s_cmp_ge_u32 s40, 10\ns_cselect_b32 s46, 32, 24\ns_cselect_b32 s47, 640, 0\ns_add_u32 s48, s0, s46\ns_addc_u32 s49, s1, 0\ns_load_dwordx2 s[12:13], s[48:49], 0\nv_subrev_u32 v13, s47, v7",1)
    post=post.replace(f"v_mul_lo_u32 v9, v7, s44","v_mul_lo_u32 v9, v13, s44",1)
    out=(pre+post).split("\n")
if __name__=="__main__":
    extra=int(sys.argv[2]) if len(sys.argv)>2 else 0
    open(sys.argv[1],'w').write(build(extra))
```

```python
from common import *
class F1Map:
    def __init__(s, base=0):
        s.lane16=1; s.n31=2; s.hi=3
        s.t=list(range(4,16))
        s.Fc=[16,20]; s.Fs=[24,28]
        s.ring=[32+4*i for i in range(8)]
        s.accD=64; s.accM=80; s.acc4D=96; s.acc4M=112
        s.R=[128+4*i for i in range(20)]
        s.R4=[208+4*i for i in range(5)]
        s.Bx=228; s.Bx4=232
        s.vb=[236,237,238,239]
        s.u=list(range(240,256))
        s.LX=0; s.LS=40960; s.LR=40960+2048; s.LZ=40960+2048+512
        s.lds=s.LZ+4*4096
def vr(b,n=4): return f"v[{b}:{b+n-1}]"
def f1_lane_setup(A,m):
    A(f"""v_and_b32 v{m.t[0]}, 63, v0
v_lshlrev_b32 v{m.lane16}, 4, v{m.t[0]}
v_and_b32 v{m.n31}, 31, v0
v_bfe_u32 v{m.hi}, v0, 5, 1""")
def f1_issue_R(A,m,sW,sQd,sRe,sIm):
    t=m.t; u=m.u
    A(f"""v_and_b32 v{t[0]}, 15, v{m.n31}
v_cmp_gt_u32 vcc, 16, v{m.n31}
v_mov_b32 v{t[1]}, s{sIm}
v_mov_b32 v{t[2]}, s{sIm+1}
v_mov_b32 v{t[3]}, s{sRe}
v_mov_b32 v{t[4]}, s{sRe+1}
v_cndmask_b32 v{t[1]}, v{t[1]}, v{t[3]}, vcc
v_cndmask_b32 v{t[2]}, v{t[2]}, v{t[4]}, vcc""")
    A(f"s_mul_i32 s3, s{sQd}, 5\ns_add_u32 s4, s3, s{sW}\ns_add_u32 s5, s3, 4\ns_lshl_b32 s4, s4, 4\ns_lshl_b32 s5, s5, 4")
    for (sg,dst) in ((4,u[0]),(5,u[2])):
        A(f"""v_add_u32 v{t[3]}, s{sg}, v{t[0]}
v_cmp_eq_u32 vcc, 0, v{t[3]}
v_mov_b32 v{t[4]}, 320
v_cndmask_b32 v{t[3]}, v{t[3]}, v{t[4]}, vcc
v_mul_u32_u24 v{t[3]}, 1280, v{t[3]}
v_lshl_add_u32 v{t[3]}, v{m.hi}, 4, v{t[3]}
v_add_co_u32 v{dst}, vcc, v{t[1]}, v{t[3]}
v_addc_co_u32 v{dst+1}, vcc, 0, v{t[2]}, vcc""")
    for sg in range(4):
        A(f"s_add_u32 s3, s{sW}, {sg}\ns_and_b32 s3, s3, 3\ns_mul_i32 s3, s3, 160")
        A(f"v_add_co_u32 v{u[4]}, vcc, s3, v{u[0]}\nv_addc_co_u32 v{u[5]}, vcc, 0, v{u[1]}, vcc")
        if sg==0:
            A(f"v_add_co_u32 v{u[6]}, vcc, s3, v{u[2]}\nv_addc_co_u32 v{u[7]}, vcc, 0, v{u[3]}, vcc")
        for i in range(5):
            A.vmem(f"global_load_dwordx4 {vr(m.R[5*sg+i])}, v[{u[4]}:{u[5]}], off offset:{32*i}",('R',5*sg+i))
            if sg==0: A.vmem(f"global_load_dwordx4 {vr(m.R4[i])}, v[{u[6]}:{u[7]}], off offset:{32*i}",('R4',i))
def f1_tables(A,m,sW,sBeta):
    t=m.t
    A(f"""v_cvt_f32_u32 v{t[0]}, v{m.n31}
v_mul_f32 v{t[0]}, {hx(f32(1.0/2048))}, v{t[0]}
v_lshlrev_b32 v{t[1]}, 8, v{m.hi}
v_add_u32 v{t[1]}, s{sBeta}, v{t[1]}
v_cvt_f32_u32 v{t[1]}, v{t[1]}
v_mul_f32 v{t[1]}, v{t[0]}, v{t[1]}
v_mul_f32 v{t[0]}, {hx(f32(64.0))}, v{t[0]}""")
    cur=0
    for ks in range(2):
        for a in range(4):
            angs=[]
            for h in range(2):
                s8=2*a+h; c=8*(2*ks+(s8>>2))+(s8&3)
                r=t[2+h]
                A(f"v_mov_b32 v{t[4]}, {hx(f32(float(c)))}\nv_fma_f32 v{r}, v{t[4]}, v{t[0]}, v{t[1]}")
            A(f"v_cos_f32 v{t[4]}, v{t[2]}\nv_cos_f32 v{t[5]}, v{t[3]}\nv_sin_f32 v{t[6]}, -v{t[2]}\nv_sin_f32 v{t[7]}, -v{t[3]}")
            A(f"v_cvt_pk_f16_f32 v{m.Fc[ks]+a}, v{t[4]}, v{t[5]}\nv_cvt_pk_f16_f32 v{m.Fs[ks]+a}, v{t[6]}, v{t[7]}")
    A(f"""v_and_b32 v{t[0]}, 0x31, v0
v_cmp_eq_u32 vcc, 1, v{t[0]}
v_mov_b32 v{t[1]}, 0xc000
v_mov_b32 v{t[2]}, 0xbf00
v_cndmask_b32 v{m.Bx}, 0, v{t[1]}, vcc
v_cndmask_b32 v{m.Bx4}, 0, v{t[2]}, vcc""")
    for k in range(1,4): A(f"v_mov_b32 v{m.Bx+k}, 0\nv_mov_b32 v{m.Bx4+k}, 0")
    for sg in range(4):
        A(f"s_add_u32 s3, s{sW}, {sg}\ns_and_b32 s3, s3, 3\ns_mul_i32 s3, s3, 5120\nv_add_u32 v{m.vb[sg]}, s3, v{m.lane16}")
def f1_r_from_partials(A,m,sW,npart_regs):
    t=m.t; s,q=npart_regs
    A(f"""v_mul_f32 v{s}, {hx(f32(1.0/D))}, v{s}
v_mul_f32 v{q}, {hx(f32(1.0/D))}, v{q}
v_fma_f32 v{q}, -v{s}, v{s}, v{q}
v_max_f32 v{q}, 0, v{q}
v_add_f32 v{q}, {hx(f32(1e-5))}, v{q}
v_rsq_f32 v{q}, v{q}
s_lshl_b32 s3, s{sW}, 7
s_add_u32 s3, s3, {m.LR}
v_lshl_add_u32 v{t[0]}, v{m.n31}, 2, s3""")
    A.lds(f"ds_write_b32 v{t[0]}, v{q}",'rw')
def f1_main(A,m):
    seq=[]
    for sg in range(4):
        for i in range(5): seq.append((sg,i))
    def rd(n):
        sg,i=seq[n]
        a=m.ring[(2*n)%8]; b=m.ring[(2*n+1)%8]
        A.lds(f"ds_read_b128 {vr(a)}, v{m.vb[sg]} offset:{m.LX+i*1024}",('x',n,0))
        A.lds(f"ds_read_b128 {vr(b)}, v{m.vb[sg]} offset:{m.LX+20480+i*1024}",('x',n,1))
    PF=3
    for n in range(PF): rd(n)
    for n in range(20):
        sg,i=seq[n]
        a=m.ring[(2*n)%8]; b=m.ring[(2*n+1)%8]
        A.vwait(('R4',i) if sg==0 else ('R',n))
        A.lwait(('x',n,0))
        cD = '0' if n==0 else vr(m.accD,16); cM='0' if n==0 else vr(m.accM,16)
        A(f"v_mfma_f32_32x32x16_bf16 {vr(m.accD,16)}, {vr(a)}, {vr(m.R[n])}, {cD}")
        if sg==0:
            c='0' if i==0 else vr(m.acc4D,16)
            A(f"v_mfma_f32_32x32x16_bf16 {vr(m.acc4D,16)}, {vr(a)}, {vr(m.R4[i])}, {c}")
        A.lwait(('x',n,1))
        A(f"v_mfma_f32_32x32x16_bf16 {vr(m.accM,16)}, {vr(b)}, {vr(m.R[n])}, {cM}")
        if sg==0:
            c='0' if i==0 else vr(m.acc4M,16)
            A(f"v_mfma_f32_32x32x16_bf16 {vr(m.acc4M,16)}, {vr(b)}, {vr(m.R4[i])}, {c}")
        if n+PF<20: rd(n+PF)
        elif n+PF==20:
            A.lds(f"ds_read_b128 {vr(m.ring[(2*20)%8])}, v{m.lane16} offset:{m.LX+20480}",('x20',))
    A.lwait(('x20',))
    x20=m.ring[(40)%8]
    A(f"v_mfma_f32_32x32x16_bf16 {vr(m.accM,16)}, {vr(x20)}, {vr(m.Bx)}, {vr(m.accM,16)}")
    A(f"v_mfma_f32_32x32x16_bf16 {vr(m.acc4M,16)}, {vr(x20)}, {vr(m.Bx4)}, {vr(m.acc4M,16)}")
def f1_combine(A,m,accD,accM,sgn):
    for r in range(16): A(f"v_fma_f32 v{accD+r}, v{accM+r}, v{sgn}, v{accD+r}")
def f1_stage2(A,m,z,rr,tmpC,tmpS,zf,vVoff,sSoff,sc):
    for r in range(16): A(f"v_mul_f32 v{z+r}, v{z+r}, v{rr+r}")
    for k in range(8): A(f"v_cvt_pk_f16_f32 v{zf+k}, v{z+2*k}, v{z+2*k+1}")
    A(f"v_mfma_f32_32x32x16_f16 {vr(tmpC,16)}, {vr(zf)}, {vr(m.Fc[0])}, 0")
    A(f"v_mfma_f32_32x32x16_f16 {vr(tmpS,16)}, {vr(zf)}, {vr(m.Fs[0])}, 0")
    A(f"v_mfma_f32_32x32x16_f16 {vr(tmpC,16)}, {vr(zf+4)}, {vr(m.Fc[1])}, {vr(tmpC,16)}")
    A(f"v_mfma_f32_32x32x16_f16 {vr(tmpS,16)}, {vr(zf+4)}, {vr(m.Fs[1])}, {vr(tmpS,16)}")
    for k in range(8):
        A(f"v_sub_f32 v{z+k}, v{tmpC+k}, v{tmpS+8+k}")
        A(f"v_add_f32 v{z+8+k}, v{tmpS+k}, v{tmpC+8+k}")
    for k in range(4):
        A(f"v_cvt_pk_f16_f32 v{zf+k}, v{z+2*k}, v{z+2*k+1}")
        A(f"v_cvt_pk_f16_f32 v{zf+4+k}, v{z+8+2*k}, v{z+8+2*k+1}")
    A.vmem(f"buffer_store_dwordx4 {vr(zf)}, v{vVoff}, s[8:11], s{sSoff} offen {sc}",'vst')
    A.vmem(f"buffer_store_dwordx4 {vr(zf+4)}, v{vVoff}, s[8:11], s{sSoff} offen offset:32 {sc}",'vst')
def f1_tail(A,m,sW,sQd,sBeta,voff_ws,sc,lab):
    t=m.t; u=m.u
    sgn=u[0]
    A(f"v_cmp_gt_u32 vcc, 16, v{m.n31}\nv_mov_b32 v{t[0]}, -1.0\nv_cndmask_b32 v{sgn}, v{t[0]}, 1.0, vcc")
    rr=m.R[0]
    A(f"s_lshl_b32 s3, s{sW}, 7\ns_add_u32 s3, s3, {m.LR}\nv_lshl_add_u32 v{t[1]}, v{m.hi}, 4, s3")
    for j in range(4): A.lds(f"ds_read_b128 {vr(rr+4*j)}, v{t[1]} offset:{32*j}",'rr')
    f1_combine(A,m,m.acc4D,m.acc4M,sgn)
    A(f"s_lshl_b32 s3, s{sW}, 12\ns_add_u32 s3, s3, {m.LZ}\nv_add_u32 v{t[2]}, s3, v{m.lane16}")
    for k in range(4): A.lds(f"ds_write_b128 v{t[2]}, {vr(m.acc4D+4*k)} offset:{1024*k}",'zw')
    f1_combine(A,m,m.accD,m.accM,sgn)
    A(f"s_mov_b32 s3, 81920\nv_mul_lo_u32 v{u[1]}, v{m.n31}, s3\nv_lshl_add_u32 v{u[1]}, v{m.hi}, 4, v{u[1]}")
    A(f"s_mul_i32 s4, s{sQd}, 5\ns_add_u32 s5, s4, s{sW}\ns_lshl_b32 s5, s5, 12\ns_lshl_b32 s6, s{sBeta}, 6\ns_add_u32 s5, s5, s6\ns_add_u32 s5, s5, {voff_ws}")
    A(f"s_add_u32 s4, s4, 4\ns_lshl_b32 s4, s4, 12\ns_add_u32 s4, s4, s6\ns_add_u32 s4, s4, {voff_ws}")
    A.lwait('rr')
    tmpC=m.R[4]; tmpS=m.R[8]; zf=m.R[12]
    f1_stage2(A,m,m.accD,rr,tmpC,tmpS,zf,u[1],5,sc)
    A.lwait_all()
    A("s_barrier")
    A(f"s_cmp_lg_u32 s{sW}, 3\ns_cbranch_scc1 {lab}_f1done")
    p=m.accM
    A(f"v_add_u32 v{t[2]}, {m.LZ}, v{m.lane16}")
    for w in range(3):
        for k in range(4): A.lds(f"ds_read_b128 {vr(p+4*k)}, v{t[2]} offset:{4096*w+1024*k}",('zr',w))
        A.lwait(('zr',w))
        for r in range(16): A(f"v_add_f32 v{m.acc4D+r}, v{m.acc4D+r}, v{p+r}")
    zf2=m.R[14]
    f1_stage2(A,m,m.acc4D,rr,tmpC,tmpS,zf2,u[1],4,sc)
    A(f"{lab}_f1done:")
def f1_layer1(A,m,sW,sBp,sQd,sBeta,lab):
    t=m.t; u=m.u
    f1_lane_setup(A,m)
    A(f"""v_lshlrev_b32 v{t[0]}, 6, v{m.n31}
v_add_u32 v{t[0]}, s{sBeta}, v{t[0]}
v_mul_u32_u24 v{t[0]}, 1280, v{t[0]}
v_lshl_add_u32 v{t[1]}, v{m.hi}, 4, v{t[0]}
s_mul_i32 s3, s{sW}, 160
v_lshlrev_b32 v{t[2]}, 4, v{m.hi}
v_sub_u32 v{t[2]}, v{t[0]}, v{t[2]}
s_sub_u32 s4, 1136, s3
v_add_u32 v{t[2]}, s4, v{t[2]}""")
    A(f"""v_add_u32 v{t[3]}, 496, v{t[0]}
s_cmp_eq_u32 s{sW}, 0
s_cselect_b32 s4, 0, 1
v_or_b32 v{t[4]}, s4, v{m.hi}
v_cmp_eq_u32 vcc, 0, v{t[4]}
v_cndmask_b32 v{t[3]}, v{t[2]}, v{t[3]}, vcc""")
    stD=[64+4*i for i in range(5)]; stW=[84+4*i for i in range(5)]; stU=[32+i for i in range(5)]; stM=[108+4*i for i in range(5)]
    for i in range(5):
        A.vmem(f"buffer_load_dwordx4 {vr(stD[i])}, v{t[1]}, s[12:15], s3 offen offset:{32*i}",'xd')
        A.vmem(f"buffer_load_dwordx4 {vr(stW[i])}, v{t[2]}, s[12:15], 0 offen offset:{128-32*i}",'xm')
        A.vmem(f"buffer_load_ushort v{stU[i]}, v{t[3] if i==0 else t[2]}, s[12:15], 0 offen offset:{144-32*i}",'xu')
    f1_issue_R(A,m,sW,sQd,40,42)
    f1_tables(A,m,sW,sBeta)
    A.vwait('xu')
    A("s_mov_b32 s3, 0x07060100")
    for i in range(5):
        w=stW[i]; o=stM[i]
        A(f"v_perm_b32 v{o}, v{w+3}, v{stU[i]}, s3")
        A(f"v_perm_b32 v{o+1}, v{w+2}, v{w+3}, s3")
        A(f"v_perm_b32 v{o+2}, v{w+1}, v{w+2}, s3")
        A(f"v_perm_b32 v{o+3}, v{w}, v{w+1}, s3")
    for i in range(5):
        A.lds(f"ds_write_b128 v{m.vb[0]}, {vr(stD[i])} offset:{m.LX+1024*i}",'xw')
        A.lds(f"ds_write_b128 v{m.vb[0]}, {vr(stM[i])} offset:{m.LX+20480+1024*i}",'xw')
    A(f"s_cmp_lg_u32 s{sW}, s{sQd}\ns_cbranch_scc1 {lab}_nocopy")
    A(f"s_mul_i32 s3, s{sBp}, {XB}\ns_add_u32 s3, s3, {WS_X0}\ns_add_u32 s4, s3, 20480")
    for i in range(5):
        off=1024*i
        if off<4096:
            A(f"buffer_store_dwordx4 {vr(stD[i])}, v{m.vb[0]}, s[8:11], s3 offen offset:{off}")
            A(f"buffer_store_dwordx4 {vr(stM[i])}, v{m.vb[0]}, s[8:11], s4 offen offset:{off}")
        else:
            A(f"s_add_u32 s3, s3, 4096\ns_add_u32 s4, s4, 4096")
            A(f"buffer_store_dwordx4 {vr(stD[i])}, v{m.vb[0]}, s[8:11], s3 offen")
            A(f"buffer_store_dwordx4 {vr(stM[i])}, v{m.vb[0]}, s[8:11], s4 offen")
    A(f"{lab}_nocopy:")
    sm,sq=u[8],u[9]
    A(f"v_mov_b32 v{sm}, 0\nv_mov_b32 v{sq}, 0\nv_mov_b32 v{u[10]}, 0x3f803f80")
    for fr in stD+stM:
        for k in range(4):
            A(f"v_dot2c_f32_bf16 v{sm}, v{fr+k}, v{u[10]}\nv_dot2c_f32_bf16 v{sq}, v{fr+k}, v{fr+k}")
    A(f"""s_lshl_b32 s3, s{sW}, 4
s_add_u32 s3, s3, {m.LS}
v_lshlrev_b32 v{t[0]}, 6, v{m.n31}
v_lshl_add_u32 v{t[0]}, v{m.hi}, 3, v{t[0]}
v_add_u32 v{t[0]}, s3, v{t[0]}""")
    A.lds(f"ds_write_b64 v{t[0]}, v[{sm}:{sq}]",'sw')
    A.lwait_all()
    A("s_barrier")
    A(f"v_lshlrev_b32 v{t[0]}, 6, v{m.n31}")
    P=m.ring[0]
    for k in range(4): A.lds(f"ds_read_b128 {vr(P+4*k)}, v{t[0]} offset:{m.LS+16*k}",'sr')
    A.lwait('sr')
    for k in range(1,8):
        A(f"v_add_f32 v{P}, v{P}, v{P+2*k}\nv_add_f32 v{P+1}, v{P+1}, v{P+2*k+1}")
    f1_r_from_partials(A,m,sW,(P,P+1))
    A.lwait_all()
    f1_main(A,m)
    f1_tail(A,m,sW,sQd,sBeta,WS_V1,'',lab)
def f1_layer2(A,m,sW,sBp,sQd,sBeta,lab,sc,have_R=False):
    t=m.t; u=m.u
    f1_lane_setup(A,m)
    st=[64+4*i for i in range(10)]
    A(f"s_mul_i32 s3, s{sBp}, {XB}\ns_mul_i32 s4, s{sW}, 5120\ns_add_u32 s3, s3, s4\ns_add_u32 s3, s3, {WS_X2}\ns_add_u32 s4, s3, 20480\ns_add_u32 s5, s3, 4096\ns_add_u32 s6, s4, 4096")
    for i in range(5):
        A.vmem(f"buffer_load_dwordx4 {vr(st[i])}, v{m.lane16}, s[8:11], s{3 if i<4 else 5} offen offset:{1024*(i%4)} {sc}",'x')
        A.vmem(f"buffer_load_dwordx4 {vr(st[5+i])}, v{m.lane16}, s[8:11], s{4 if i<4 else 6} offen offset:{1024*(i%4)} {sc}",'x')
    P=m.ring[0]
    A(f"s_lshl_b32 s3, s{sBp}, 11\ns_add_u32 s3, s3, {WS_ST2}\nv_lshlrev_b32 v{t[0]}, 10, v{m.hi}\nv_lshl_add_u32 v{t[0]}, v{m.n31}, 3, v{t[0]}")
    for k in range(4): A.vmem(f"buffer_load_dwordx2 v[{P+2*k}:{P+2*k+1}], v{t[0]}, s[8:11], s3 offen offset:{256*k} {sc}",'st')
    if not have_R: f1_issue_R(A,m,sW,sQd,40,42)
    f1_tables(A,m,sW,sBeta)
    A.vwait('x')
    for i in range(5):
        A.lds(f"ds_write_b128 v{m.vb[0]}, {vr(st[i])} offset:{m.LX+1024*i}",'xw')
        A.lds(f"ds_write_b128 v{m.vb[0]}, {vr(st[5+i])} offset:{m.LX+20480+1024*i}",'xw')
    A.vwait('st')
    for k in range(1,4): A(f"v_add_f32 v{P}, v{P}, v{P+2*k}\nv_add_f32 v{P+1}, v{P+1}, v{P+2*k+1}")
    for r in (P,P+1):
        A(f"v_mov_b32 v{t[0]}, v{r}\ns_nop 1\nv_permlane32_swap_b32 v{t[0]}, v{r}\nv_add_f32 v{r}, v{r}, v{t[0]}")
    f1_r_from_partials(A,m,sW,(P,P+1))
    A.lwait_all()
    A("s_barrier")
    f1_main(A,m)
    f1_tail(A,m,sW,sQd,sBeta,WS_V2,'',lab)
```

```python
from common import *
def vr(b,n=4): return f"v[{b}:{b+n-1}]"
class F2Map:
    def __init__(s):
        s.u=2; s.hi=3; s.lane16=1
        s.t=list(range(4,32))
        s.B=32; s.Af=64; s.acc=96; s.rd=112; s.rm=120
        s.LV=122880
IMG=4224
def f2_scalar(A,sG,sI,sW,c):
    A(f"""s_cmp_ge_u32 s{sI}, 5
s_cselect_b32 s3, 2, 0
s_cselect_b32 s4, 5, 0
s_sub_u32 s30, s{sI}, s4
s_lshl_b32 s27, s{sG}, 2
s_add_u32 s27, s27, s3""")
    s_beta_of_pos(A,24,27,4,5)
    A(f"""s_and_b32 s26, s{sW}, 1
s_lshr_b32 s25, s{sW}, 1
s_lshl_b32 s3, s30, 1
s_add_u32 s25, s25, s3
s_add_u32 s27, s27, s26
s_lshl_b32 s3, s26, 5
s_add_u32 s29, s24, s3
s_sub_u32 s31, 64, s29
s_and_b32 s31, s31, 63""")
    s_pos_of_beta(A,28,31,4,5)
def f2_loads(A,m,sW,c):
    t=m.t
    A(f"""v_and_b32 v{t[0]}, 63, v0
v_lshlrev_b32 v{m.lane16}, 4, v{t[0]}
v_and_b32 v{m.u}, 31, v0
v_bfe_u32 v{m.hi}, v0, 5, 1""")
    A(f"""s_mul_i32 s3, s24, 20
s_lshl_b32 s4, s30, 2
s_add_u32 s3, s3, s4
s_add_u32 s3, s3, s{sW}
s_lshl_b32 s3, s3, 12
s_add_u32 s3, s3, {c['V']}
s_mul_i32 s4, s{sW}, {IMG}
s_add_u32 m0, s4, {m.LV}""")
    for k in range(4): A.vmem(f"buffer_load_dwordx4 v{m.lane16}, s[8:11], s3 offen offset:{1024*k} lds",'vimg')
    A(f"""s_mul_i32 s3, s27, {XB}
s_lshl_b32 s5, s25, 11
s_add_u32 s3, s3, s5
s_add_u32 s32, s3, {c['XIN']}
s_mul_i32 s4, s28, {XB}
s_add_u32 s4, s4, s5
s_add_u32 s33, s4, {c['XIN']+20480}
s_cmp_eq_u32 s29, 0
s_cselect_b32 s6, 32, 31
v_sub_u32 v{t[1]}, s6, v{m.u}
v_and_b32 v{t[1]}, 31, v{t[1]}
v_lshlrev_b32 v{t[2]}, 9, v{m.hi}
v_lshl_add_u32 v{t[2]}, v{t[1]}, 4, v{t[2]}""")
    for k in range(2): A.vmem(f"buffer_load_dwordx4 {vr(m.rd+4*k)}, v{m.lane16}, s[8:11], s32 offen offset:{1024*k}",'res')
    for k in range(2): A.vmem(f"buffer_load_dwordx4 {vr(m.rm+4*k)}, v{t[2]}, s[8:11], s33 offen offset:{1024*k}",'res')
def f2_tables(A,m):
    t=m.t
    A(f"""v_lshlrev_b32 v{t[3]}, 1, v{m.u}
v_add_u32 v{t[3]}, s26, v{t[3]}
v_cvt_f32_u32 v{t[3]}, v{t[3]}
v_mul_f32 v{t[3]}, {hx(f32(1/64))}, v{t[3]}
v_cvt_f32_u32 v{t[4]}, v{m.hi}
v_mul_f32 v{t[4]}, 4.0, v{t[4]}
v_mul_f32 v{t[4]}, v{t[4]}, v{t[3]}""")
    for ks in range(8):
        for a in range(4):
            r=t[5+(a&1)*3]
            A(f"s_mov_b32 s3, {hx(f32(float(8*ks+a)))}\nv_fma_f32 v{r}, s3, v{t[3]}, v{t[4]}")
            A(f"v_cos_f32 v{r+1}, v{r}\nv_sin_f32 v{r+2}, v{r}")
            A(f"v_cvt_pk_f16_f32 v{m.B+4*ks+a}, v{r+1}, v{r+2}")
def f2_compute(A,m,sW,c,lab,sc):
    t=m.t
    A(f"""s_lshr_b32 s3, s{sW}, 1
s_mul_i32 s3, s3, {2*IMG}
s_add_u32 s3, s3, {m.LV}
v_bfe_u32 v{t[5]}, v0, 4, 1
v_mul_u32_u24 v{t[5]}, {IMG}, v{t[5]}
v_lshl_add_u32 v{t[5]}, v{m.hi}, 8, v{t[5]}
v_and_b32 v{t[6]}, 15, v0
v_lshl_add_u32 v{t[5]}, v{t[6]}, 3, v{t[5]}
v_add_u32 v{t[5]}, s3, v{t[5]}""")
    A.vwait('vimg')
    A("s_barrier")
    for ks in range(8):
        for h in range(2):
            A.lds(f"ds_read_b64_tr_b16 {vr(m.Af+4*ks+2*h,2)}, v{t[5]} offset:{ks*512+h*128}",('a',ks))
        if ks>=4:
            k0=ks-4
            A.lwait(('a',k0))
            A(f"v_mfma_f32_32x32x16_f16 {vr(m.acc,16)}, {vr(m.Af+4*k0)}, {vr(m.B+4*k0)}, {'0' if k0==0 else vr(m.acc,16)}")
    for k0 in range(4,8):
        A.lwait(('a',k0))
        A(f"v_mfma_f32_32x32x16_f16 {vr(m.acc,16)}, {vr(m.Af+4*k0)}, {vr(m.B+4*k0)}, {vr(m.acc,16)}")
    A.vwait('res')
    ones=t[7]; sm=t[8]; sq=t[9]; sm2=t[10]; sq2=t[11]; a=t[12]; b=t[13]
    A(f"v_mov_b32 v{ones}, 0x3f803f80\nv_mov_b32 v{sm}, 0\nv_mov_b32 v{sq}, 0\nv_mov_b32 v{sm2}, 0\nv_mov_b32 v{sq2}, 0")
    def outp(res,s_,q_):
        for k in range(8):
            A(f"""v_lshlrev_b32 v{a}, 16, v{res+k}
v_and_b32 v{b}, 0xffff0000, v{res+k}
v_add_f32 v{a}, v{a}, v{m.acc+2*k}
v_add_f32 v{b}, v{b}, v{m.acc+2*k+1}
v_cvt_pk_bf16_f32 v{res+k}, v{a}, v{b}
v_dot2c_f32_bf16 v{s_}, v{res+k}, v{ones}
v_dot2c_f32_bf16 v{q_}, v{res+k}, v{res+k}""")
    outp(m.rm,sm2,sq2)
    A(f"s_add_u32 s4, s33, {c['XOUT']-c['XIN']}" if c['XOUT']>=c['XIN'] else f"s_sub_u32 s4, s33, {c['XIN']-c['XOUT']}")
    for k in range(2): A.vmem(f"buffer_store_dwordx4 {vr(m.rm+4*k)}, v{t[2]}, s[8:11], s4 offen offset:{1024*k} {sc}",'st')
    A(f"s_cmp_lg_u32 s25, 0\ns_cbranch_scc1 {lab}_nodc\nv_cmp_eq_u32 vcc, 0, v{m.hi}\nv_cndmask_b32 v{m.acc}, v{m.acc}, 0, vcc\n{lab}_nodc:")
    outp(m.rd,sm,sq)
    A(f"s_add_u32 s5, s32, {c['XOUT']-c['XIN']}" if c['XOUT']>=c['XIN'] else f"s_sub_u32 s5, s32, {c['XIN']-c['XOUT']}")
    for k in range(2): A.vmem(f"buffer_store_dwordx4 {vr(m.rd+4*k)}, v{m.lane16}, s[8:11], s5 offen offset:{1024*k} {sc}",'st')
    for r in (sm,sq,sm2,sq2):
        A(f"v_mov_b32 v{a}, v{r}\ns_nop 1\nv_permlane32_swap_b32 v{a}, v{r}\nv_add_f32 v{r}, v{r}, v{a}")
    A(f"""s_mul_i32 s3, s27, 5120
s_lshl_b32 s6, s25, 8
s_add_u32 s3, s3, s6
s_mul_i32 s4, s28, 5120
s_add_u32 s4, s4, s6
s_add_u32 s4, s4, 2560
v_lshl_add_u32 v{a}, v{m.u}, 3, s3
v_lshl_add_u32 v{b}, v{t[1]}, 3, s4
v_cmp_eq_u32 vcc, 0, v{m.hi}
v_cndmask_b32 v{a}, v{b}, v{a}, vcc
v_cndmask_b32 v{sm}, v{sm2}, v{sm}, vcc
v_cndmask_b32 v{sq}, v{sq2}, v{sq}, vcc
s_mov_b32 s3, {c['ST']}""")
    assert sq==sm+1 and sm%2==0
    A.vmem(f"buffer_store_dwordx2 v[{sm}:{sq}], v{a}, s[8:11], s3 offen {sc}",'st')
```

```python
from common import *
def vr(b,n=4): return f"v[{b}:{b+n-1}]"
def ar(b,n=4): return f"a[{b}:{b+n-1}]"
class G1Map:
    def __init__(s):
        s.lane16=1; s.u=2; s.hi=3
        s.r=4; s.rm=5; s.c=6; s.c2=7
        s.vH=8
        s.vcs=9
        s.t=list(range(10,32))
        s.ring=[32+4*i for i in range(8)]
        s.acc=[64,80,96]
        s.cs=112
        s.X=0
        s.LW=0
        s.LCS=122880+4*4224
        s.lds=s.LCS+1024
LOG2E=1.4426950408889634
def g1_prefetch_w(A,m,sW,sT0,stages):
    for n in stages:
        slot=n%6
        A(f"s_mul_i32 s3, s{sW}, 5120\ns_add_u32 s4, s3, s{sT0}\ns_add_u32 s4, s4, {n*20480}\ns_add_u32 m0, s3, {m.LW+slot*20480}")
        for k in range(5):
            if k==4: A("s_add_u32 s4, s4, 4096\ns_add_u32 m0, m0, 4096"); off=0
            else: off=1024*k
            A.vmem(f"buffer_load_dwordx4 v{m.lane16}, s[8:11], s4 offen offset:{off} lds",('w',n))
def g1_load_x(A,m,sXoff,sc):
    for kk in range(40):
        if kk%4==0 and kk>0: A(f"s_add_u32 s{sXoff}, s{sXoff}, 4096")
        A.vmem(f"buffer_load_dwordx4 {ar(m.X+4*kk)}, v{m.lane16}, s[8:11], s{sXoff} offen offset:{1024*(kk%4)} {sc}",('x',kk))
def g1_load_stats(A,m,sSt,sc):
    t=m.t
    A(f"v_mul_u32_u24 v{t[20]}, 2560, v{m.hi}\nv_lshl_add_u32 v{t[20]}, v{m.u}, 3, v{t[20]}")
    for i in range(10):
        A.vmem(f"buffer_load_dwordx2 v[{t[2*i]}:{t[2*i+1]}], v{t[20]}, s[8:11], s{sSt} offen offset:{256*i} {sc}",'st')
def g1_stats(A,m):
    t=m.t
    A.vwait('st')
    for i in range(1,10): A(f"v_add_f32 v{t[0]}, v{t[0]}, v{t[2*i]}\nv_add_f32 v{t[1]}, v{t[1]}, v{t[2*i+1]}")
    for r in (t[0],t[1]):
        A(f"v_mov_b32 v{t[2]}, v{r}\ns_nop 1\nv_permlane32_swap_b32 v{t[2]}, v{r}\nv_add_f32 v{r}, v{r}, v{t[2]}")
    A(f"""v_mul_f32 v{t[0]}, {hx(f32(1.0/D))}, v{t[0]}
v_mul_f32 v{t[1]}, {hx(f32(1.0/D))}, v{t[1]}
v_fma_f32 v{t[1]}, -v{t[0]}, v{t[0]}, v{t[1]}
v_max_f32 v{t[1]}, 0, v{t[1]}
v_add_f32 v{t[1]}, {hx(f32(1e-5))}, v{t[1]}
v_rsq_f32 v{m.r}, v{t[1]}
s_nop 0
v_mul_f32 v{m.rm}, v{m.r}, v{t[0]}
v_mul_f32 v{m.c}, {hx(f32(-LOG2E))}, v{m.r}
v_mul_f32 v{m.c2}, {hx(f32(LOG2E))}, v{m.rm}
v_sub_f32 v{m.rm}, 0, v{m.rm}""")
def epi_ops(m,acc,tile,sHoff,sc):
    t=m.t; L=[]
    for k in range(8):
        g=acc+k; u=acc+8+k; a=t[(k%4)*2]; b=t[(k%4)*2+1]
        L.append(f"v_mul_f32 v{a}, v{m.c2}, v{m.cs+k}")
        L.append(f"v_mul_f32 v{b}, v{m.rm}, v{m.cs+8+k}")
        L.append(f"v_fma_f32 v{a}, v{g}, v{m.c}, v{a}")
        L.append(f"v_fma_f32 v{b}, v{u}, v{m.r}, v{b}")
        L.append(f"v_exp_f32 v{a}, v{a}")
        L.append(f"NOP")
        L.append(f"v_add_f32 v{a}, 1.0, v{a}")
        L.append(f"v_rcp_f32 v{a}, v{a}")
        L.append(f"NOP")
        L.append(f"v_mul_f32 v{g}, v{a}, v{b}")
        if k%2==1: L.append(f"v_cvt_pk_bf16_f32 v{t[8+k//2]}, v{g-1}, v{g}")
    L.append(("STORE",f"buffer_store_dwordx4 v[{t[8]}:{t[11]}], v{m.vH}, s[8:11], s{sHoff} offen {sc}"))
    return L
def interleave_epi(L):
    return [x for x in L if x!="NOP"]
SLOT={0:0,1:1,2:2,3:3,4:4,5:5,6:0,7:2,8:1,9:3,10:4,11:5,12:0,13:2}
def epi_list(m,acc,sHoff,sc):
    t=m.t; L=[]
    for k in range(0,8,2):
        a0,b0,a1,b1=t[0],t[1],t[2],t[3]
        if (k//2)%2: a0,b0,a1,b1=t[4],t[5],t[6],t[7]
        g0,g1=acc+k,acc+k+1; u0,u1=acc+8+k,acc+8+k+1
        L+= [f"v_mul_f32 v{a0}, v{m.c2}, v{m.cs+k}", f"v_mul_f32 v{a1}, v{m.c2}, v{m.cs+k+1}",
             f"v_mul_f32 v{b0}, v{m.rm}, v{m.cs+8+k}", f"v_mul_f32 v{b1}, v{m.rm}, v{m.cs+8+k+1}",
             f"v_fma_f32 v{a0}, v{g0}, v{m.c}, v{a0}", f"v_fma_f32 v{a1}, v{g1}, v{m.c}, v{a1}",
             f"v_fma_f32 v{b0}, v{u0}, v{m.r}, v{b0}", f"v_exp_f32 v{a0}, v{a0}",
             f"v_fma_f32 v{b1}, v{u1}, v{m.r}, v{b1}", f"v_exp_f32 v{a1}, v{a1}",
             f"v_add_f32 v{a0}, 1.0, v{a0}", f"v_add_f32 v{a1}, 1.0, v{a1}",
             f"v_rcp_f32 v{a0}, v{a0}", f"v_rcp_f32 v{a1}, v{a1}",
             f"v_mul_f32 v{b0}, v{a0}, v{b0}", f"v_mul_f32 v{b1}, v{a1}, v{b1}",
             f"v_cvt_pk_bf16_f32 v{t[8+k//2]}, v{b0}, v{b1}"]
    return L
def g1_dma_stage(A,m,sW5,sT0,n):
    slot=SLOT[n]
    ops=[]
    ops.append(lambda: A(f"s_add_u32 s4, s{sW5}, s{sT0}\ns_add_u32 s4, s4, {n*20480}\ns_add_u32 m0, s{sW5}, {m.LW+slot*20480}"))
    for k in range(5):
        if k==4:
            ops.append(lambda: (A("s_add_u32 s4, s4, 4096\ns_add_u32 m0, m0, 4096"), A.vmem(f"buffer_load_dwordx4 v{m.lane16}, s[8:11], s4 offen lds",('w',n))))
        else:
            ops.append(lambda k=k: A.vmem(f"buffer_load_dwordx4 v{m.lane16}, s[8:11], s4 offen offset:{1024*k} lds",('w',n)))
    return ops
def g1_body(A,m,sW5,sT0,sH,sNT,lab,sc,extra_fill=None,hook=None):
    PF=5
    steps=[]
    for kk in range(40): steps+= [(0,kk),(1,kk)]
    for tl in range(2,7): steps+= [(tl,kk) for kk in range(40)]
    nsteps=len(steps)
    def stage(tl,kk): return 2*tl+(1 if kk>=20 else 0)
    vW=m.t[20]
    def rd(s):
        tl,kk=steps[s]
        off=m.LW+SLOT[stage(tl,kk)]*20480+(kk%20)*1024
        if off<65536: A.lds(f"ds_read_b128 {vr(m.ring[s%8])}, v{m.lane16} offset:{off}",('wf',s))
        else: A.lds(f"ds_read_b128 {vr(m.ring[s%8])}, v{vW} offset:{off-61440}",('wf',s))
    A(f"v_add_u32 v{vW}, 61440, v{m.lane16}")
    fill=[]
    def emit_fill(n):
        for _ in range(n):
            if not fill: return
            f=fill.pop(0)
            if callable(f): f()
            else: A(f)
    def queue_epi(tl):
        acc=m.acc[tl%3]
        for j in range(4):
            fill.append(lambda j=j,tl=tl: A.lds(f"ds_read_b128 {vr(m.cs+4*j)}, v{m.vcs} offset:{tl*128+16*j}",('cs',tl)))
        fill.append(lambda tl=tl: A.lwait(('cs',tl)))
        fill.extend(epi_list(m,acc,sH,sc))
        fill.append(lambda tl=tl: A.vmem(f"buffer_store_dwordx4 v[{m.t[8]}:{m.t[11]}], v{m.vH}, s[8:11], s{sH} offen {sc}",('h',tl)))
        fill.append(f"s_add_u32 s{sH}, s{sH}, 512")
    bound={}
    bound[39]=(None,[6,7]); bound[79]=(None,[8,9])
    s0=80
    for n in range(4,14):
        last=s0+(n-4)*20+19
        req=n+2 if n+2<=13 else None
        iss={4:[10],5:[11],6:[12],7:[13]}.get(n,[])
        bound[last]=(req,iss)
    for s in range(PF): rd(s)
    for s in range(nsteps):
        tl,kk=steps[s]
        if tl==6 and kk==0:
            A(f"s_cmp_eq_u32 s{sNT}, 6\ns_cbranch_scc1 {lab}_tail6")
            saved=(list(A.vm),list(A.lg),list(fill))
        if s<80: A.vwait(('x',kk))
        A.lwait(('wf',s))
        acc=m.acc[tl%3]
        c='0' if kk==0 else vr(acc,16)
        A(f"v_mfma_f32_32x32x16_bf16 {vr(acc,16)}, {vr(m.ring[s%8])}, {ar(m.X+4*kk)}, {c}")
        if s+PF<nsteps: rd(s+PF)
        if s==80+2: queue_epi(0); queue_epi(1)
        if tl>=3 and kk==2: queue_epi(tl-1)
        nf = 4 if tl==2 else 2
        if tl>=2 and kk>=36: nf=8
        emit_fill(nf)
        if extra_fill is not None: extra_fill(s)
        if s in bound:
            req,iss=bound[s]
            if tl>=2 and kk==39: emit_fill(1000)
            if req is not None: A.vwait(('w',req))
            if req is not None or iss: A("s_barrier")
            if hook is not None: hook(s)
            for n in iss:
                fill[0:0]=g1_dma_stage(A,m,sW5,sT0,n)
    emit_fill(1000)
    queue_epi(6); emit_fill(1000)
    A(f"s_branch {lab}_g1end")
    A(f"{lab}_tail6:")
    A.vm,A.lg,fill2=saved
    fill[:]=fill2
    emit_fill(1000)
    queue_epi(5); emit_fill(1000)
    A(f"{lab}_g1end:")
    A.vm=['unknown']; A.lg=[]
```

```python
from common import *
def vr(b,n=4): return f"v[{b}:{b+n-1}]"
def ar(b,n=4): return f"a[{b}:{b+n-1}]"
def late_ks(nlate):
    s=set()
    for fc in range(16):
        for j in range(nlate):
            s.add((T0(fc+1)-1-j)>>1)
    return sorted(s)
def wave_ks(nlate=1):
    late=late_ks(nlate); early=[k for k in range(54) if k not in late]
    order=early+late
    W=[[],[],[],[]]
    for i,k in enumerate(early): W[i%4].append(k)
    cnt=[14,14,13,13]
    li=0
    for w in range(4):
        while len(W[w])<cnt[w]:
            W[w].append(late[li]); li+=1
    assert li==len(late), (li,len(late))
    return W,len(early)
class G2Map:
    def __init__(s):
        s.lane16=1; s.n=2; s.q=3
        s.t=list(range(4,32))
        s.hring=[32+16*i for i in range(4)]
        s.acc=64
        W=[('a',160+4*i) for i in range(24)]+[('v',128+4*i) for i in range(32)]+[('a',4*i) for i in range(14)]
        s.W=W
        s.LR=0
def reg(x,n=4): return f"{x[0]}[{x[1]}:{x[1]+n-1}]"
WKS,NEARLY=wave_ks(1)
def g2_ks_setup(A,sW,sK):
    L=[list(W)+[W[-1]]*(14-len(W)) for W in WKS]
    for d in range(3):
        vals=[]
        for w in range(4):
            v=0
            for j in range(5):
                idx=5*d+j
                if idx<14: v|=L[w][idx]<<(6*j)
            vals.append(v)
        A(f"s_mov_b32 s3, {vals[0]}\ns_cmp_eq_u32 s{sW}, 1\ns_cselect_b32 s3, {vals[1]}, s3\ns_cmp_eq_u32 s{sW}, 2\ns_cselect_b32 s3, {vals[2]}, s3\ns_cmp_eq_u32 s{sW}, 3\ns_cselect_b32 s3, {vals[3]}, s3")
        for j in range(5):
            idx=5*d+j
            if idx<14: A(f"s_bfe_u32 s{sK+idx}, s3, {hex((6<<16)|(6*j))}")
def g2_load_w(A,m,j,sK,sWD,vtmp,cts=range(5)):
    A(f"s_mul_i32 s3, s{sK+j}, 5120\nv_add_u32 v{vtmp}, s3, v{m.lane16}")
    for ct in cts:
        x=m.W[5*j+ct]
        if ct<4: A.vmem(f"buffer_load_dwordx4 {reg(x)}, v{vtmp}, s[8:11], s{sWD} offen offset:{1024*ct}",('W',j))
        else: A.vmem(f"buffer_load_dwordx4 {reg(x)}, v{vtmp}, s[8:11], s{sWD+1} offen",('W',j))
def g2_load_h(A,m,j,sK,sHb,vtmp,sc):
    A(f"v_lshl_add_u32 v{vtmp}, s{sK+j}, 10, v{m.lane16}")
    for rho in range(4):
        A.vmem(f"buffer_load_dwordx4 {vr(m.hring[j%4]+4*rho)}, v{vtmp}, s[8:11], s{sHb+rho} offen {sc}",('h',j))
def g2_main(A,m,sW,sK,sHb,sc,lab,wait_late=None,jlate=10,pre_issued=0,fill=None):
    t=m.t
    PF=3
    for j in range(pre_issued,PF):
        g2_load_h(A,m,j,sK,sHb,t[j%2],sc)
    for j in range(14):
        if j+PF<14:
            if wait_late is not None and j+PF==jlate: wait_late()
            g2_load_h(A,m,j+PF,sK,sHb,t[(j+PF)%2],sc)
        A.vwait(('W',j)); A.vwait(('h',j))
        if j==13: A(f"s_cmp_ge_u32 s{sW}, 2\ns_cbranch_scc1 {lab}_skip13")
        for ct in range(5):
            for rho in range(4):
                a=m.acc+(rho*5+ct)*4
                c='0' if j==0 else ar(a)
                A(f"v_mfma_f32_16x16x32_bf16 {ar(a)}, {reg(m.W[5*j+ct])}, {vr(m.hring[j%4]+4*rho)}, {c}")
            if fill is not None: fill(j,ct)
        if j==13: A(f"{lab}_skip13:")
def g2_reduce(A,m,sW):
    t=m.t
    for rho in range(1,4):
        A(f"s_add_u32 s3, s{sW}, {rho}\ns_and_b32 s3, s3, 3\ns_mul_i32 s3, s3, 15360\ns_add_u32 s3, s3, {m.LR+(rho-1)*5120}\nv_add_u32 v{t[rho]}, s3, v{m.lane16}")
        for ct in range(5):
            A.lds(f"ds_write_b128 v{t[rho]}, {ar(m.acc+(rho*5+ct)*4)} offset:{1024*ct}",'rw')
    A.lwait_all()
    A("s_barrier")
    A(f"s_mul_i32 s3, s{sW}, 15360\ns_add_u32 s3, s3, {m.LR}\nv_add_u32 v{t[0]}, s3, v{m.lane16}")
    own=32; par=52
    for k in range(20): A(f"v_accvgpr_read_b32 v{own+k}, a{m.acc+k}")
    for rho in range(3):
        for ct in range(5):
            A.lds(f"ds_read_b128 {vr(par+20*rho+4*ct)}, v{t[0]} offset:{rho*5120+ct*1024}",('rr',rho))
    for rho in range(3):
        A.lwait(('rr',rho))
        for k in range(20): A(f"v_add_f32 v{own+k}, v{own+k}, v{par+20*rho+k}")
    return own
def g2_res_loads(A,m,sXres,sc):
    t=m.t
    res=112
    A.vmem(f"buffer_load_dwordx4 {vr(res)}, v{t[10]}, s[8:11], s{sXres} offen {sc}",'res')
    A.vmem(f"buffer_load_dwordx4 {vr(res+4)}, v{t[10]}, s[8:11], s{sXres} offen offset:2048 {sc}",'res')
    A.vmem(f"buffer_load_dwordx2 {vr(res+8,2)}, v{t[11]}, s[8:11], s{sXres+1} offen {sc}",'res')
    return res
def g2_addr(A,m,sW):
    t=m.t
    A(f"""v_and_b32 v{m.n}, 15, v0
v_bfe_u32 v{m.q}, v0, 4, 2
s_and_b32 s3, s{sW}, 1
s_lshl_b32 s3, s3, 4
v_add_u32 v{t[9]}, s3, v{m.n}
v_lshlrev_b32 v{t[10]}, 9, v{m.q}
v_lshl_add_u32 v{t[10]}, v{t[9]}, 4, v{t[10]}
v_lshrrev_b32 v{t[11]}, 1, v{m.q}
v_lshlrev_b32 v{t[11]}, 9, v{t[11]}
v_lshl_add_u32 v{t[11]}, v{t[9]}, 4, v{t[11]}
v_and_b32 v{t[12]}, 1, v{m.q}
v_lshl_add_u32 v{t[11]}, v{t[12]}, 3, v{t[11]}""")
def g2_epilogue(A,m,own,res,final,sXout,sSt,sCb,sBeta,sc,lab):
    t=m.t
    A.vwait('res')
    a,b=t[12],t[13]
    src=[own+0,own+2,own+4,own+6, own+8,own+10,own+12,own+14, own+16,own+18]
    for k in range(10):
        A(f"""v_lshlrev_b32 v{a}, 16, v{res+k}
v_and_b32 v{b}, 0xffff0000, v{res+k}
v_add_f32 v{a}, v{a}, v{src[k]}
v_add_f32 v{b}, v{b}, v{src[k]+1}
v_cvt_pk_bf16_f32 v{res+k}, v{a}, v{b}""")
    if not final:
        A.vmem(f"buffer_store_dwordx4 {vr(res)}, v{t[10]}, s[8:11], s{sXout} offen {sc}",'st')
        A.vmem(f"buffer_store_dwordx4 {vr(res+4)}, v{t[10]}, s[8:11], s{sXout} offen offset:2048 {sc}",'st')
        A.vmem(f"buffer_store_dwordx2 {vr(res+8,2)}, v{t[11]}, s[8:11], s{sXout+1} offen {sc}",'st')
        sm,sq=t[14],t[15]
        assert sm%2==0
        A(f"v_mov_b32 v{sm}, 0\nv_mov_b32 v{sq}, 0\nv_mov_b32 v{t[16]}, 0x3f803f80")
        for k in range(10): A(f"v_dot2c_f32_bf16 v{sm}, v{res+k}, v{t[16]}\nv_dot2c_f32_bf16 v{sq}, v{res+k}, v{res+k}")
        for r in (sm,sq):
            A(f"v_mov_b32 v{a}, v{r}\ns_nop 1\nv_permlane16_swap_b32 v{a}, v{r}\nv_add_f32 v{r}, v{r}, v{a}")
            A(f"v_mov_b32 v{a}, v{r}\ns_nop 1\nv_permlane32_swap_b32 v{a}, v{r}\nv_add_f32 v{r}, v{r}, v{a}")
        A(f"v_lshlrev_b32 v{b}, 3, v{t[9]}\nv_cmp_eq_u32 vcc, 0, v{m.q}\ns_and_saveexec_b64 s[6:7], vcc")
        A.vmem(f"buffer_store_dwordx2 v[{sm}:{sq}], v{b}, s[8:11], s{sSt} offen {sc}",'st')
        A("s_mov_b64 exec, s[6:7]")
    else:
        row=t[14]
        A(f"v_lshlrev_b32 v{row}, 6, v{t[9]}\nv_add_u32 v{row}, s{sBeta}, v{row}\nv_mul_u32_u24 v{row}, 1280, v{row}")
        A(f"s_cmp_ge_u32 s{sCb}, 4\ns_cbranch_scc1 {lab}_mir")
        A(f"s_mul_i32 s3, s{sCb}, 160\nv_lshl_add_u32 v{a}, v{m.q}, 4, v{row}\nv_lshl_add_u32 v{b}, v{m.q}, 3, v{row}")
        A(f"buffer_store_dwordx4 {vr(res)}, v{a}, s[16:19], s3 offen")
        A(f"buffer_store_dwordx4 {vr(res+4)}, v{a}, s[16:19], s3 offen offset:64")
        A(f"buffer_store_dwordx2 {vr(res+8,2)}, v{b}, s[16:19], s3 offen offset:128")
        A(f"s_branch {lab}_outdone")
        A(f"{lab}_mir:")
        A(f"s_mul_i32 s3, s{sCb}, 160\ns_sub_u32 s3, 1908, s3\nv_lshlrev_b32 v{a}, 4, v{m.q}\nv_sub_u32 v{a}, v{row}, v{a}\nv_add_u32 v{a}, s3, v{a}")
        A("s_mov_b32 s4, 0x07060100")
        o=96
        for pr in range(2):
            w=res+4*pr
            A(f"v_perm_b32 v{o}, v{w+2}, v{w+3}, s4")
            A(f"v_perm_b32 v{o+1}, v{w+1}, v{w+2}, s4")
            A(f"v_perm_b32 v{o+2}, v{w}, v{w+1}, s4")
            A(f"v_subrev_u32 v{b}, {64*pr}, v{a}")
            A(f"buffer_store_dwordx3 {vr(o,3)}, v{b}, s[16:19], 0 offen")
            A(f"v_subrev_u32 v{o+4}, 2, v{b}\nbuffer_store_short_d16_hi v{w+3}, v{o+4}, s[16:19], 0 offen")
            A(f"v_add_u32 v{o+4}, 12, v{b}")
            if pr==0:
                A(f"v_add_u32 v{o+5}, 640, v{row}\ns_cmp_eq_u32 s{sCb}, 4\ns_cselect_b32 s5, 0, 1\nv_or_b32 v{o+6}, s5, v{m.q}\nv_cmp_eq_u32 vcc, 0, v{o+6}\nv_cndmask_b32 v{o+4}, v{o+4}, v{o+5}, vcc")
            A(f"buffer_store_short v{w}, v{o+4}, s[16:19], 0 offen")
            A("s_nop 1")
        w=res+8
        A(f"s_mul_i32 s3, s{sCb}, 160\ns_sub_u32 s3, {2*(958-64)}, s3\nv_lshlrev_b32 v{b}, 3, v{m.q}\nv_sub_u32 v{b}, v{row}, v{b}\nv_add_u32 v{b}, s3, v{b}")
        A(f"v_perm_b32 v{o}, v{w}, v{w+1}, s4")
        A(f"buffer_store_dword v{o}, v{b}, s[16:19], 0 offen")
        A(f"v_subrev_u32 v{o+4}, 2, v{b}\nbuffer_store_short_d16_hi v{w+1}, v{o+4}, s[16:19], 0 offen")
        A(f"v_add_u32 v{o+5}, 4, v{b}\nbuffer_store_short v{w}, v{o+5}, s[16:19], 0 offen")
        A(f"{lab}_outdone:")
```

```python
from common import *
def vr(b,n=4): return f"v[{b}:{b+n-1}]"
def transpose8(A,src,dst):
    for fc in range(8):
        sel='s30' if fc%2==0 else 's31'
        for k in range(4):
            A(f"v_perm_b32 v{dst+4*fc+k}, v{src+4*(2*k+1)+(fc>>1)}, v{src+4*(2*k)+(fc>>1)}, {sel}")
def prep_gu(A,lab):
    A("""s_mov_b32 s30, 0x05040100
s_mov_b32 s31, 0x07060302
s_lshr_b32 s24, s23, 1
s_and_b32 s25, s23, 1
v_and_b32 v1, 7, v0
v_bfe_u32 v2, v0, 3, 3
s_lshl_b32 s26, s24, 7
v_lshlrev_b32 v3, 4, v1
v_add_u32 v3, s26, v3""")
    NT=3
    src=[16+32*k for k in range(NT)]
    for k in range(NT):
        if k==2: A(f"s_cmp_ge_u32 s20, 2\ns_cbranch_scc1 {lab}_gu_ld_done")
        A(f"s_add_u32 s27, s20, {4*k}\ns_lshl_b32 s27, s27, 6\nv_lshl_add_u32 v4, v2, 3, s27")
        for r in range(8):
            A(f"""v_add_u32 v5, {r}, v4
v_sub_u32 v6, 960, v5
v_cmp_lt_u32 vcc, 320, v5
v_cndmask_b32 v5, v5, v6, vcc
v_mul_u32_u24 v5, {F*2}, v5
v_add_u32 v5, v5, v3
buffer_load_dwordx4 {vr(src[k]+4*r)}, v5, s[12:15], 0 offen""")
    A(f"{lab}_gu_ld_done:")
    A("""v_lshrrev_b32 v7, 1, v1
s_lshl_b32 s27, s24, 2
v_add_u32 v7, s27, v7
v_mul_u32_u24 v7, 40960, v7
v_and_b32 v8, 1, v1
v_lshlrev_b32 v8, 6, v8
v_add_u32 v7, v7, v8
s_lshl_b32 s27, s25, 8
v_add_u32 v7, s27, v7
v_and_b32 v8, 1, v2
v_lshlrev_b32 v8, 9, v8
v_add_u32 v7, v7, v8
v_lshrrev_b32 v8, 1, v2
v_lshl_add_u32 v7, v8, 10, v7""")
    for c in range(8): A(f"v_mov_b32 v{240+c}, 0")
    A("v_mov_b32 v248, 0x3f803f80")
    A("s_waitcnt vmcnt(0)")
    dst=112
    for k in range(NT):
        if k==2: A(f"s_cmp_ge_u32 s20, 2\ns_cbranch_scc1 {lab}_gu_st_done")
        transpose8(A,src[k],dst)
        A(f"s_add_u32 s27, s20, {4*k}\ns_lshl_b32 s27, s27, 12\ns_add_u32 s27, s27, {WS_WGU}")
        for fc in range(8):
            A(f"buffer_store_dwordx4 {vr(dst+4*fc)}, v7, s[8:11], s27 offen offset:{(fc&3)*16+(fc>>2)*128}")
            for q in range(4): A(f"v_dot2c_f32_bf16 v{240+fc}, v{dst+4*fc+q}, v248")
        A("s_nop 1")
    A(f"{lab}_gu_st_done:")
    for c in range(8):
        A(f"v_add_f32_dpp v{240+c}, v{240+c}, v{240+c} row_ror:8 row_mask:0xf bank_mask:0xf")
    for c in range(8):
        A(f"v_mov_b32 v{200+c}, v{240+c}")
    for c in range(8):
        A(f"v_permlane16_swap_b32 v{200+c}, v{240+c}")
    for c in range(8):
        A(f"v_add_f32 v{240+c}, v{240+c}, v{200+c}")
    for c in range(8):
        A(f"v_mov_b32 v{200+c}, v{240+c}")
    for c in range(8):
        A(f"v_permlane32_swap_b32 v{200+c}, v{240+c}")
    for c in range(8):
        A(f"v_add_f32 v{240+c}, v{240+c}, v{200+c}")
    A("s_lshl_b32 s27, s20, 8\nv_lshlrev_b32 v9, 5, v1\nv_add_u32 v9, s27, v9")
    A("ds_write_b128 v9, v[240:243]\nds_write_b128 v9, v[244:247] offset:16\ns_waitcnt lgkmcnt(0)\ns_barrier")
    A(f"s_cmp_lg_u32 s20, 0\ns_cbranch_scc1 {lab}_gu_end")
    A("v_lshlrev_b32 v9, 2, v0")
    for w in range(4): A(f"ds_read_b32 v{10+w}, v9 offset:{256*w}")
    A("s_waitcnt lgkmcnt(0)\nv_add_f32 v10, v10, v11\nv_add_f32 v12, v12, v13\nv_add_f32 v10, v10, v12")
    A(f"""v_lshrrev_b32 v11, 3, v0
v_lshlrev_b32 v11, 6, v11
v_and_b32 v12, 7, v0
v_lshl_add_u32 v11, v12, 2, v11
s_lshl_b32 s27, s24, 9
s_lshl_b32 s28, s25, 5
s_add_u32 s27, s27, s28
s_add_u32 s27, s27, {WS_CS}
buffer_store_dword v10, v11, s[8:11], s27 offen""")
    A(f"{lab}_gu_end:")
def prep_wd(A,lab):
    A("""s_mov_b32 s30, 0x05040100
s_mov_b32 s31, 0x07060302
s_mul_hi_u32 s24, s23, 429496730
s_mul_i32 s25, s24, 10
s_sub_u32 s25, s23, s25
v_and_b32 v1, 7, v0
v_bfe_u32 v2, v0, 3, 3
s_lshl_b32 s26, s24, 6
v_lshl_add_u32 v4, v2, 3, s26
s_lshl_b32 s27, s25, 6
v_lshl_add_u32 v3, v1, 3, s27""")
    A("v_mul_u32_u24 v5, 1280, v4\nv_lshl_add_u32 v5, v3, 1, v5")
    for r in range(8):
        A(f"buffer_load_dwordx4 {vr(16+4*r)}, v5, s[12:15], 0 offen\nv_add_u32 v5, 1280, v5")
    A("""v_lshrrev_b32 v6, 5, v4
v_mul_u32_u24 v6, 5120, v6
v_bfe_u32 v7, v4, 3, 2
v_lshl_add_u32 v6, v7, 8, v6""")
    A("s_mov_b32 s28, 52429")
    for fc in range(8):
        a=100+fc
        A(f"""v_add_u32 v8, {fc}, v3
v_sub_u32 v9, 960, v8
v_cmp_lt_u32 vcc, 320, v8
v_cndmask_b32 v8, v8, v9, vcc
v_mul_u32_u24 v9, s28, v8
v_lshrrev_b32 v9, 22, v9
v_mul_u32_u24 v10, 80, v9
v_sub_u32 v8, v8, v10
v_mul_u32_u24 v9, {54*5*1024}, v9
v_add_u32 v9, v9, v6
v_lshrrev_b32 v10, 5, v8
v_lshlrev_b32 v10, 1, v10
v_bfe_u32 v11, v8, 2, 1
v_add_u32 v10, v10, v11
v_bfe_u32 v11, v8, 3, 2
v_lshlrev_b32 v11, 2, v11
v_and_b32 v12, 3, v8
v_add_u32 v11, v11, v12
v_and_b32 v12, 15, v8
v_cmp_le_u32 vcc, 64, v8
v_cndmask_b32 v10, v10, 4, vcc
v_cndmask_b32 v11, v11, v12, vcc
v_lshl_add_u32 v9, v10, 10, v9
v_lshl_add_u32 v{a}, v11, 4, v9""")
    A("s_waitcnt vmcnt(0)")
    transpose8(A,16,48)
    A(f"s_mov_b32 s27, {WS_WD}")
    for fc in range(8):
        A(f"buffer_store_dwordx4 {vr(48+4*fc)}, v{100+fc}, s[8:11], s27 offen")
```

```python
import sys
from common import *
import f1 as F1, prep as PR, f2 as F2, g1 as G1, g2 as G2
def load_ptrs(A,lst):
    for (s,off) in lst: A(f"s_load_dwordx2 s[{s}:{s+1}], s[0:1], {off}")
NPREP_GU=54; NPREP_WD=68
def k_l1(name):
    A=Asm(); m=F1.F1Map()
    A(f"s_cmp_ge_u32 s2, {256+NPREP_GU+NPREP_WD}\ns_cbranch_scc1 {name}_end")
    load_ptrs(A,[(4,KA_WS),(6,KA_X),(40,KA_HRE),(42,KA_HIM),(44,KA_WG),(46,KA_WU),(48,KA_WDN)])
    A("v_lshrrev_b32 v1, 6, v0\ns_nop 0\nv_readfirstlane_b32 s20, v1")
    A("s_waitcnt lgkmcnt(0)")
    srd(A,8,4,WS_SIZE)
    A(f"s_cmp_ge_u32 s2, 256\ns_cbranch_scc1 {name}_prep")
    srd(A,12,6,S*D*2)
    A("s_and_b32 s21, s2, 7\ns_lshl_b32 s21, s21, 3\ns_lshr_b32 s22, s2, 5\ns_add_u32 s21, s21, s22\ns_bfe_u32 s22, s2, 0x20003")
    s_beta_of_pos(A,23,21,24,25)
    F1.f1_layer1(A,m,20,21,22,23,name)
    A(f"s_branch {name}_end")
    A(f"{name}_prep:")
    A.vm=[];A.lg=[]
    A(f"s_sub_u32 s23, s2, 256\ns_cmp_ge_u32 s23, {NPREP_GU}\ns_cbranch_scc1 {name}_wd")
    A("s_bitcmp1_b32 s23, 0\ns_cselect_b32 s4, s46, s44\ns_cselect_b32 s5, s47, s45")
    srd(A,12,4,D*F*2)
    PR.prep_gu(A,name)
    A(f"s_branch {name}_end")
    A(f"{name}_wd:")
    A(f"s_sub_u32 s23, s23, {NPREP_GU}\ns_lshl_b32 s23, s23, 2\ns_add_u32 s23, s23, s20\ns_cmp_ge_u32 s23, 270\ns_cbranch_scc1 {name}_end")
    srd(A,12,48,D*F*2)
    PR.prep_wd(A,name)
    A(f"{name}_end:\ns_endpgm")
    t,n=A.text()
    return kernel_head(name)+t+kernel_desc(name,256,256), (name,256+NPREP_GU+NPREP_WD,256,m.lds)

def map_gi(A):
    A("s_and_b32 s21, s2, 7\ns_lshl_b32 s21, s21, 1\ns_lshr_b32 s22, s2, 7\ns_add_u32 s21, s21, s22\ns_bfe_u32 s22, s2, 0x40003")
def common_head(A,name,ptrs):
    A(f"s_cmp_ge_u32 s2, 256\ns_cbranch_scc1 {name}_end")
    load_ptrs(A,ptrs)
    A("v_lshrrev_b32 v1, 6, v0\ns_nop 0\nv_readfirstlane_b32 s20, v1")
    map_gi(A)
    A("s_waitcnt lgkmcnt(0)")
    srd(A,8,4,WS_SIZE)
def cfg(layer):
    if layer==1: return dict(V=WS_V1,XIN=WS_X0,XOUT=WS_X1,ST=WS_ST1,H=WS_H1)
    return dict(V=WS_V2,XIN=WS_X2,XOUT=WS_X3,ST=WS_ST3,H=WS_H2)
def k_f2(name,layer):
    A=Asm(); m=F2.F2Map(); c=cfg(layer)
    common_head(A,name,[(4,KA_WS)])
    A(f"s_cmp_ge_u32 s22, 10\ns_cbranch_scc1 {name}_end")
    F2.f2_scalar(A,21,22,20,c)
    F2.f2_loads(A,m,20,c)
    F2.f2_tables(A,m)
    F2.f2_compute(A,m,20,c,name,'')
    A(f"{name}_end:\ns_endpgm")
    t,n=A.text()
    return kernel_head(name)+t+kernel_desc(name,128,128),(name,256,256,m.LV+4*F2.IMG)
def g1_setup(A,m,c):
    A(f"""v_and_b32 v10, 63, v0
v_lshlrev_b32 v{m.lane16}, 4, v10
v_and_b32 v{m.u}, 31, v0
v_bfe_u32 v{m.hi}, v0, 5, 1
s_mul_i32 s34, s20, 5120
s_mul_i32 s3, s22, 27
s_lshr_b32 s3, s3, 2
s_add_u32 s4, s22, 1
s_mul_i32 s4, s4, 27
s_lshr_b32 s4, s4, 2
s_sub_u32 s37, s4, s3
s_mul_i32 s35, s3, 40960
s_add_u32 s35, s35, {WS_WGU}
s_lshl_b32 s5, s21, 2
s_add_u32 s5, s5, s20
s_mul_i32 s36, s5, 110592
s_lshl_b32 s4, s3, 9
s_add_u32 s36, s36, s4
s_add_u32 s36, s36, {c['H']}
s_mul_i32 s38, s5, {XB}
s_add_u32 s38, s38, {c['XOUT']}
s_mul_i32 s39, s5, 5120
s_add_u32 s39, s39, {c['ST']}
v_lshrrev_b32 v10, 4, v{m.u}
v_mul_u32_u24 v10, 55296, v10
v_lshl_add_u32 v10, v{m.hi}, 8, v10
v_and_b32 v11, 15, v0
v_lshl_add_u32 v{m.vH}, v11, 4, v10
v_lshlrev_b32 v{m.vcs}, 6, v{m.hi}
v_add_u32 v{m.vcs}, {m.LCS}, v{m.vcs}""")
def g1_cs_dma(A,m):
    A(f"s_lshl_b32 s4, s3, 7\ns_add_u32 s4, s4, {WS_CS}\ns_mov_b32 m0, {m.LCS}")
def k_g1(name,layer):
    A=Asm(); m=G1.G1Map(); c=cfg(layer)
    common_head(A,name,[(4,KA_WS)])
    g1_setup(A,m,c)
    A(f"s_mul_i32 s3, s22, 27\ns_lshr_b32 s3, s3, 2\ns_lshl_b32 s4, s3, 7\ns_add_u32 s4, s4, {WS_CS}\ns_mov_b32 m0, {m.LCS}\ns_nop 0")
    A.vmem(f"buffer_load_dwordx4 v{m.lane16}, s[8:11], s4 offen lds",'cs')
    for n in range(6):
        for f in G1.g1_dma_stage(A,m,34,35,n): f()
    A.vwait_all()
    A("s_barrier")
    G1.g1_load_stats(A,m,39,'')
    G1.g1_load_x(A,m,38,'')
    G1.g1_stats(A,m)
    G1.g1_body(A,m,34,35,36,37,name,'')
    A(f"{name}_end:\ns_endpgm")
    t,n=A.text()
    return kernel_head(name)+t+kernel_desc(name,512,256),(name,256,256,m.lds)
def g2_setup(A,m,c,layer):
    A(f"""v_and_b32 v10, 63, v0
v_lshlrev_b32 v{m.lane16}, 4, v10
s_and_b32 s23, s22, 7
s_lshr_b32 s24, s22, 3
s_mul_i32 s54, s23, 276480
s_add_u32 s54, s54, {WS_WD}
s_add_u32 s55, s54, 4096
s_lshl_b32 s5, s21, 3
s_lshl_b32 s6, s24, 2
s_add_u32 s5, s5, s6""")
    for rho in range(4):
        A(f"s_add_u32 s3, s20, {rho}\ns_and_b32 s3, s3, 3\ns_add_u32 s3, s3, s5\ns_mul_i32 s3, s3, 55296\ns_add_u32 s{56+rho}, s3, {c['H']}")
    G2.g2_ks_setup(A,20,40)
    A(f"""s_lshl_b32 s5, s21, 2
s_lshl_b32 s6, s24, 1
s_add_u32 s5, s5, s6
s_lshr_b32 s6, s20, 1
s_add_u32 s66, s5, s6
s_mul_i32 s3, s66, {XB}
s_mul_i32 s4, s23, 5120
s_add_u32 s3, s3, s4
s_add_u32 s60, s3, {c['XOUT']}
s_add_u32 s61, s60, 4096
s_add_u32 s62, s3, {WS_X2}
s_add_u32 s63, s62, 4096
s_lshl_b32 s3, s66, 11
s_lshl_b32 s4, s23, 8
s_add_u32 s3, s3, s4
s_add_u32 s64, s3, {WS_ST2}""")
    s_beta_of_pos(A,65,66,3,4)
def k_g2(name,layer):
    A=Asm(); m=G2.G2Map(); c=cfg(layer)
    common_head(A,name,[(4,KA_WS),(6,KA_OUT)])
    srd(A,16,6,S*D*2)
    g2_setup(A,m,c,layer)
    for j in range(14):
        G2.g2_load_w(A,m,j,40,54,m.t[j%2])
        if j==10: A.vwait(('W',3))
    A.vwait_all()
    G2.g2_addr(A,m,20)
    G2.g2_main(A,m,20,40,56,'',name)
    res=G2.g2_res_loads(A,m,60,'')
    own=G2.g2_reduce(A,m,20)
    G2.g2_epilogue(A,m,own,res,layer==2,62,64,23,65,'',name)
    A(f"{name}_end:\ns_endpgm")
    t,n=A.text()
    return kernel_head(name)+t+kernel_desc(name,512,256),(name,256,256,61440)
def k_f1b(name):
    A=Asm(); m=F1.F1Map()
    common_head(A,name,[(4,KA_WS),(40,KA_HRE),(42,KA_HIM)])
    A("s_lshl_b32 s23, s21, 2\ns_lshr_b32 s3, s22, 2\ns_add_u32 s23, s23, s3\ns_and_b32 s24, s22, 3")
    s_beta_of_pos(A,25,23,3,4)
    F1.f1_layer2(A,m,20,23,24,25,name,'')
    A(f"{name}_end:\ns_endpgm")
    t,n=A.text()
    return kernel_head(name)+t+kernel_desc(name,256,256),(name,256,256,m.lds)
def build(kernels):
    hdr=[];body=[]
    for (txt,(n,g,b,l)) in kernels:
        hdr.append(f"; @launch kernel={n} grid=({g},1,1) block=({b},1,1) lds={l}")
    seen=set()
    for (txt,(n,g,b,l)) in kernels:
        if n not in seen: body.append(txt); seen.add(n)
    return "\n".join(hdr)+'\n.amdgcn_target "amdgcn-amd-amdhsa--gfx950"\n'+"\n".join(body)
if __name__=="__main__":
    ks=[k_l1("l1_kernel"),k_f2("f2a_kernel",1),k_g1("g1a_kernel",1),k_g2("g2a_kernel",1),k_f1b("f1b_kernel"),k_f2("f2b_kernel",2),k_g1("g1b_kernel",2),k_g2("g2b_kernel",2)]
    open(sys.argv[1],'w').write(build(ks))
```
